```python
import torch

def _softmax(x, axis=-1):
    return torch.softmax(x, dim=axis)
def _gelu(x):
    return torch.nn.functional.gelu(x, approximate="tanh")
def _silu(x):
    return torch.nn.functional.silu(x)
def _sigmoid(x):
    return torch.sigmoid(x)
def _layernorm(x, axis=-1, eps=1e-5):
    m = x.mean(dim=axis, keepdim=True)
    v = x.var(dim=axis, keepdim=True, unbiased=False)
    return (x - m) / torch.sqrt(v + eps)
def _scatter_add(tgt, idx, src, axis=0):
    return tgt.clone().index_add_(axis, idx, src)
def _segment_sum(src, seg, n):
    out = torch.zeros((n,) + src.shape[1:], dtype=src.dtype)
    return out.index_add_(0, seg, src)
def _pad(x, pw):
    flat = tuple(v for pair in reversed(pw) for v in pair)
    return torch.nn.functional.pad(x, flat)

kernel_name = 'gated_mix__mha_block__swiglu_ffn__prompt'

def setup_inputs():

    _w = (lambda a: (lambda t: t.to(torch.bfloat16) if t.is_floating_point() else t)(torch.as_tensor(a)))
    def _A_setup():
        B, S, D, H = 1, 2048, 640, 32
        return {
            "x": _w((lambda *s: torch.randn(*s, dtype=torch.bfloat16) * 0.05)(B, S, D)),
            "wqkv": _w((lambda *s: torch.randn(*s, dtype=torch.bfloat16) * 0.8)(D, 3 * D)),
            "wo": _w((lambda *s: torch.randn(*s, dtype=torch.bfloat16) * 0.05)(D, D)),
        }
    _A_in = _A_setup()

    def _B_setup():
        B, S, D, F = 1, 2048, 640, 1536
        return {
            "x": _w((lambda *s: torch.randn(*s, dtype=torch.bfloat16) * 0.05)(B, S, D)),
            "w_gate": _w((lambda *s: torch.randn(*s, dtype=torch.bfloat16) * 0.1)(D, F)),
            "w_up": _w((lambda *s: torch.randn(*s, dtype=torch.bfloat16) * 0.1)(D, F)),
            "w_down": _w((lambda *s: torch.randn(*s, dtype=torch.bfloat16) * 0.1)(F, D)),
        }
    _B_in = _B_setup()

    return {
        "A_x": _A_in["x"],
        "A_wqkv": _A_in["wqkv"],
        "A_wo": _A_in["wo"],
        "B_x": _B_in["x"],
        "B_w_gate": _B_in["w_gate"],
        "B_w_up": _B_in["w_up"],
        "B_w_down": _B_in["w_down"],
        "gate_w": _w((lambda *s: torch.randn(*s, dtype=torch.bfloat16) * 0.05)(640) * 16.0),
    }

def reference(A_x, A_wqkv, A_wo, B_x, B_w_gate, B_w_up, B_w_down, gate_w):
    def _A_ref(x, wqkv, wo):
        B, S, D = x.shape
        H = 32
        Dh = D // H
        qkv = (lambda x, *d: x.permute(*d))((x @ wqkv).reshape(B, S, 3, H, Dh), 2, 0, 3, 1, 4)
        q, k, v = qkv[0], qkv[1], qkv[2]
        scores = torch.einsum("bhqd,bhkd->bhqk", q, k) * (Dh ** -0.5)
        p = _softmax(scores, axis=-1)
        o = torch.einsum("bhqk,bhkd->bhqd", p, v)
        return (lambda x, *d: x.permute(*d))(o, 0, 2, 1, 3).reshape(B, S, D) @ wo

    def _B_ref(x, w_gate, w_up, w_down):
        g = _silu(x @ w_gate)
        u = x @ w_up
        return (g * u) @ w_down

    x = A_x
    g = _sigmoid((x * gate_w).sum(-1, keepdims=True))
    a = _A_ref(x, A_wqkv, A_wo)
    b = _B_ref(x, B_w_gate, B_w_up, B_w_down)
    return g * a + (1 - g) * b
```

```python
class Asm:
    def __init__(self):
        self.lines = []
        self.uid = 0
    def __call__(self, s, *args):
        if args:
            s = s % args
        for l in s.split("\n"):
            self.lines.append("    " + l.strip())
    def label(self, name):
        self.lines.append(name + ":")
    def raw(self, s):
        self.lines.append(s)
    def comment(self, s):
        self.lines.append("    ; " + s)
    def newlabel(self, base="L"):
        self.uid += 1
        return "%s_%d" % (base, self.uid)
    def text(self):
        return "\n".join(self.lines) + "\n"

def vr(base, n=1):
    return "v%d" % base if n == 1 else "v[%d:%d]" % (base, base + n - 1)
def ar(base, n=1):
    return "a%d" % base if n == 1 else "a[%d:%d]" % (base, base + n - 1)
def sr(base, n=1):
    return "s%d" % base if n == 1 else "s[%d:%d]" % (base, base + n - 1)

def interleave(primary, fillers, start=0, per=None):
    out = []
    n = len(primary)
    slots = n - start
    m = len(fillers)
    k = 0
    for i, p in enumerate(primary):
        out.append(p)
        if i >= start:
            want = ((i - start + 1) * m + slots - 1) // slots if per is None else min(m, (i - start + 1) * per)
            while k < want:
                out.extend(fillers[k]); k += 1
    while k < m:
        out.extend(fillers[k]); k += 1
    return out

def kernel_header(a, name):
    a.raw(".globl %s" % name)
    a.raw(".p2align 8")
    a.raw(".type %s,@function" % name)
    a.label(name)

def kernel_desc(name, nvgpr, accum, nsgpr=102):
    return """.amdhsa_kernel %s
  .amdhsa_next_free_vgpr %d
  .amdhsa_next_free_sgpr %d
  .amdhsa_accum_offset %d
  .amdhsa_group_segment_fixed_size 0
  .amdhsa_kernarg_size 88
  .amdhsa_user_sgpr_count 2
  .amdhsa_user_sgpr_kernarg_segment_ptr 1
  .amdhsa_system_sgpr_workgroup_id_x 1
.end_amdhsa_kernel
""" % (name, nvgpr, nsgpr, accum)

import os
PROF = os.environ.get("PROF", "0") == "1"
from layout import PROF_OFF
TIMER = "s_memrealtime" if os.environ.get("PROFRT") else "s_memtime"
class Prof:
    def __init__(self, a, sws, swave, kidx, PB=60, RT=56, TMP=58, maxn=20):
        self.a, self.sws, self.swave, self.kidx, self.PB, self.RT, self.TMP, self.maxn = a, sws, swave, kidx, PB, RT, TMP, maxn
    early = os.environ.get("PROFEARLY")
    def estamp(self, tag, i):
        if PROF and self.early == tag:
            self.a("%s s[%d:%d]" % (TIMER, self.PB + 2*i, self.PB + 1 + 2*i))
            self.a("s_waitcnt lgkmcnt(0)")
    def stamp(self, i, wait=False):
        if PROF and self.early and 0 < i < 9: return
        if PROF:
            assert i < self.maxn
            self.a("%s s[%d:%d]" % (TIMER, self.PB + 2*i, self.PB + 1 + 2*i))
            if i == 0: self.a("s_memrealtime s[%d:%d]" % (self.RT, self.RT+1))
            if wait: self.a("s_waitcnt lgkmcnt(0)")
    def dump(self, n, vt, nw):
        if not PROF: return
        a = self.a; PB = self.PB; T = self.TMP
        a("s_waitcnt vmcnt(0)")
        self.stamp(n - 1)
        a("s_memrealtime s[%d:%d]" % (PB + 2*n, PB + 1 + 2*n))
        a("s_waitcnt lgkmcnt(0)")
        if os.environ.get("DBGT") == "2":
            L = a.newlabel("Ldbg")
            a("s_cmp_lg_u32 s2, 17")
            a("s_cbranch_scc1 %s" % L)
            a("s_and_b32 s%d, s%d, 3" % (T, self.swave))
            a("s_cmp_lg_u32 s%d, 0" % T)
            a("s_cbranch_scc1 %s" % L)
            a("s_mul_i32 s%d, s%d, 7" % (T, self.swave))
            a("s_add_u32 s%d, s%d, 8" % (T, T))
            a("s_mov_b32 s40, s22"); a("s_mov_b32 s41, s23"); a("s_mov_b32 s42, 256"); a("s_mov_b32 s43, 0x20000")
            a("s_mov_b64 exec, 1")
            a("v_mov_b32 v%d, 0" % (vt + 1))
            for k, i in enumerate((-1, 1, 2, 3, 5, 6, n - 1)):
                if i < 0: a("s_sub_u32 s%d, s%d, s%d" % (T+1, PB + 2*n, self.RT))
                else: a("s_sub_u32 s%d, s%d, s%d" % (T+1, PB + 2*i, PB))
                a("v_mov_b32 v%d, s%d" % (vt, T+1))
                a("buffer_store_dword v%d, v%d, s[40:43], s%d offen offset:%d" % (vt, vt + 1, T, 4*k))
                a("s_nop 1")
            a.label(L)
            return
        a("s_mul_i32 s%d, s2, %d" % (T, nw))
        a("s_add_u32 s%d, s%d, s%d" % (T, T, self.swave))
        a("s_lshl_b32 s%d, s%d, 7" % (T, T))
        a("s_add_u32 s%d, s%d, %d" % (T, T, PROF_OFF + self.kidx * 0x40000))
        a("s_mov_b64 exec, 1")
        a("v_mov_b32 v%d, 0" % (vt + 1))
        for i in range(n + 2):
            a("v_mov_b32 v%d, s%d" % (vt, PB + 2*i if i <= n else self.RT))
            a("buffer_store_dword v%d, v%d, s[%d:%d], s%d offen offset:%d" % (vt, vt + 1, self.sws, self.sws + 3, T, 4*i))
            a("s_nop 1")

def place(primary, gaps):
    out = []
    for i, p in enumerate(primary):
        out.append(p)
        out.extend(gaps.get(i, []))
    return out
```

```python
import struct, math, os
QREC = 40960
TREC = 82560
Q_OFF  = 0x000000
KV_OFF = 0x300000
FL_OFF = 0xA90000
FQ_OFF = FL_OFF
FH_OFF = FL_OFF + 2048
FO_OFF = FL_OFF + 4096
FD_OFF = FL_OFF + 8192
HF_OFF = 0xB00000
OF_OFF = 0x1100000
PROF_OFF = 0x1A00000
WS_BYTES = 0x1B00000
QSCALE = math.log2(math.e) / math.sqrt(20.0)
QSCALE_BITS = struct.unpack("<I", struct.pack("<f", QSCALE))[0]
```

```python
import sys, importlib, os
from asmlib import *
HEADER = open("gated_mix__mha_block__swiglu_ffn__prompt.s.ref").read().split("; Override launch geometry")[0]

DOC = """;
"""
def build(kernels, out):
    a = Asm()
    infos = []
    for g in kernels:
        infos.append(g(a))
    s = HEADER
    for i in infos:
        if len(infos) == 1 and os.environ.get("SINGLE"):
            s += "; @launch grid=(%d,1,1) block=(%d,1,1) lds=%d\n" % (i["grid"], i["block"], i["lds"]); continue
        s += "; @launch kernel=%s grid=(%d,1,1) block=(%d,1,1) lds=%d\n" % (i["name"], i["grid"], i["block"], i["lds"])
    s += DOC
    s += '.amdgcn_target "amdgcn-amd-amdhsa--gfx950"\n.text\n'
    s += a.text()
    s += '.section .rodata,"a"\n'
    for i in infos:
        s += ".p2align 6\n" + kernel_desc(i["name"], i["nvgpr"], i["accum"])
    open(out, "w").write(s)
    return infos

if __name__ == "__main__":
    ks = sys.argv[2:] if len(sys.argv) > 2 else ["k1", "k2", "k3"]
    gens = []
    for k in ks:
        m = importlib.import_module(k)
        gens.append(getattr(m, "gen_" + k[:2]))
    build(gens, sys.argv[1])
```
